```python
import torch

def _softmax(x, axis=-1):
    return torch.softmax(x, dim=axis)

def _gelu(x):
    return torch.nn.functional.gelu(x, approximate='tanh')

def _silu(x):
    return torch.nn.functional.silu(x)

def _sigmoid(x):
    return torch.sigmoid(x)

def _layernorm(x, axis=-1, eps=1e-05):
    m = x.mean(dim=axis, keepdim=True)
    v = x.var(dim=axis, keepdim=True, unbiased=False)
    return (x - m) / torch.sqrt(v + eps)

def _scatter_add(tgt, idx, src, axis=0):
    return tgt.clone().index_add_(axis, idx, src)

def _segment_sum(src, seg, n):
    out = torch.zeros((n,) + src.shape[1:], dtype=src.dtype)
    return out.index_add_(0, seg, src)

def _pad(x, pw):
    flat = tuple((v for pair in reversed(pw) for v in pair))
    return torch.nn.functional.pad(x, flat)
kernel_name = 'adaLN_cond__sliding_local_dilated__mixer_channel_mlp__prompt'

def setup_inputs():

    _w = lambda a: (lambda t: t.to(torch.bfloat16) if t.is_floating_point() else t)(torch.as_tensor(a))

    def _A_setup():
        B, S, D = (1, 2048, 512)
        return {'x': _w((lambda *s: torch.randn(*s, dtype=torch.bfloat16) * 0.05)(B, S, D)), 'wqkv': _w((lambda *s: torch.randn(*s, dtype=torch.bfloat16) * 0.05)(D, 3 * D)), 'wo': _w((lambda *s: torch.randn(*s, dtype=torch.bfloat16) * 0.05)(D, D))}
    _A_in = _A_setup()

    def _B_setup():
        B, S, D, F = (1, 2048, 512, 1376)
        return {'x': _w((lambda *s: torch.randn(*s, dtype=torch.bfloat16) * 0.05)(B, S, D)), 'w1': _w((lambda *s: torch.randn(*s, dtype=torch.bfloat16) * 3.2)(D, F) * D ** (-0.5)), 'b1': _w((lambda *s: torch.randn(*s, dtype=torch.bfloat16) * 1.6)(F)), 'w2': _w((lambda *s: torch.randn(*s, dtype=torch.bfloat16) * 1.6)(F, D) * F ** (-0.5)), 'b2': _w((lambda *s: torch.randn(*s, dtype=torch.bfloat16) * 1.6)(D))}
    _B_in = _B_setup()
    return {'A_x': _A_in['x'], 'A_wqkv': _A_in['wqkv'], 'A_wo': _A_in['wo'], 'B_x': _B_in['x'], 'B_w1': _B_in['w1'], 'B_b1': _B_in['b1'], 'B_w2': _B_in['w2'], 'B_b2': _B_in['b2'], 'c': _w((lambda *s: torch.randn(*s, dtype=torch.bfloat16) * 0.2)(1, 512) * 8.0), 'w_mod': _w((lambda *s: torch.randn(*s, dtype=torch.bfloat16) * 0.2)(512, 6 * 512) * 512 ** (-0.5) * 8.0)}

def reference(A_x, A_wqkv, A_wo, B_x, B_w1, B_b1, B_w2, B_b2, c, w_mod):

    def _A_ref(x, wqkv, wo):
        B, S, D = x.shape
        H = 32
        Dh = D // H
        W, dil = (8, 2)
        qkv = (lambda x, *d: x.permute(*d))((x @ wqkv).reshape(B, S, 3, H, Dh), 2, 0, 3, 1, 4)
        q, k, v = (qkv[0], qkv[1], qkv[2])
        scale = Dh ** (-0.5)
        pos = torch.arange(S)
        off = torch.arange(W) * dil
        idx = pos[:, None] - off[None, :]
        mask = idx >= 0
        idx_c = torch.where(mask, idx, 0).reshape(-1)
        kg = k[:, :, idx_c, :].reshape(B, H, S, W, Dh)
        vg = v[:, :, idx_c, :].reshape(B, H, S, W, Dh)
        logits = torch.einsum('bhsd,bhswd->bhsw', q, kg) * scale
        logits = torch.where(mask[None, None, :, :], logits, -1000000000.0)
        attn = _softmax(logits, axis=-1)
        o = torch.einsum('bhsw,bhswd->bhsd', attn, vg)
        return (lambda x, *d: x.permute(*d))(o, 0, 2, 1, 3).reshape(B, S, D) @ wo

    def _B_ref(x, w1, b1, w2, b2):
        y = _layernorm(x, axis=-1)
        h = _gelu(torch.einsum('bsd,df->bsf', y, w1) + b1)
        return torch.einsum('bsf,fd->bsd', h, w2) + b2
    x = A_x
    mod = (_silu(c) @ w_mod).reshape(c.shape[0], 6, 1, -1)
    sa, ca, ga, sb, cb, gb = (mod[:, 0].clone(), mod[:, 1].clone(), mod[:, 2].clone(), mod[:, 3].clone(), mod[:, 4].clone(), mod[:, 5].clone())
    h = _layernorm(x, axis=-1) * (1 + ca) + sa
    x = x + ga * _A_ref(h, A_wqkv, A_wo)
    h = _layernorm(x, axis=-1) * (1 + cb) + sb
    x = x + gb * _B_ref(h, B_w1, B_b1, B_w2, B_b2)
    return x
```

```python
import re

_MOD_RE = re.compile(r"\b(op_sel|op_sel_hi|neg_lo|neg_hi|quad_perm|bitop3):(\[[^\]]*\]|\S+)")
_REG_RE = re.compile(r"^(?:-)?(?:abs\(|\|)?([vas])(?:(\d+)|\[(\d+):(\d+)\])(?:\)|\|)?$")
TRANS = ("v_exp_f32", "v_log_f32", "v_rcp_f32", "v_rsq_f32", "v_sqrt_f32", "v_sin_f32", "v_cos_f32")


def regs_of(tok):
    tok = tok.strip()
    if tok in ("vcc",):
        return {("s", 106), ("s", 107)}
    if tok == "vcc_lo":
        return {("s", 106)}
    if tok == "vcc_hi":
        return {("s", 107)}
    if tok == "exec":
        return {("s", 126), ("s", 127)}
    if tok == "m0":
        return {("s", 124)}
    m = _REG_RE.match(tok)
    if not m:
        return set()
    k = m.group(1)
    if m.group(2) is not None:
        return {(k, int(m.group(2)))}
    return {(k, i) for i in range(int(m.group(3)), int(m.group(4)) + 1)}


class Inst:
    __slots__ = ("text", "mn", "ops", "rd", "wr", "cls", "tok", "srcc", "ab", "passes", "dpp", "wide", "data", "note")

    def __init__(self, text, tok=None):
        self.text = text.strip()
        self.tok = tok
        self.rd, self.wr = set(), set()
        self.srcc, self.ab, self.data = set(), set(), set()
        self.passes = 0
        self.dpp = False
        self.wide = False
        t = self.text
        if t.endswith(":") or t.startswith(".") or t.startswith(";"):
            self.mn, self.ops, self.cls = "", [], "label" if t.endswith(":") else "dir"
            return
        if t.startswith("@"):
            self.mn, self.ops, self.cls = t, [], "pseudo"
            return
        parts = t.split(None, 1)
        mn = parts[0]
        self.mn = mn
        rest = _MOD_RE.sub("", parts[1]) if len(parts) > 1 else ""
        ops = [o.strip() for o in rest.split(",")] if rest.strip() else []
        flags = []
        if ops:
            last = ops[-1].split()
            ops[-1] = last[0] if last else ""
            flags = last[1:]
        self.ops = ops
        R = [regs_of(o) for o in ops]
        allr = lambda seq: set().union(*seq) if seq else set()
        if mn.startswith("v_mfma"):
            self.cls = "mfma"
            self.wr = R[0]
            self.ab = R[1] | R[2]
            self.srcc = R[3]
            self.rd = self.ab | self.srcc
            self.passes = 8 if "32x32" in mn else 4
        elif mn.startswith("v_"):
            self.cls = "valu"
            self.dpp = mn.endswith("_dpp")
            base = mn.replace("_dpp", "").replace("_e32", "").replace("_e64", "")
            self.wr = set(R[0])
            self.rd = allr(R[1:])
            if base.startswith("v_permlane") and "swap" in base:
                self.wr = R[0] | R[1]
                self.rd = R[0] | R[1]
            elif base.startswith(("v_fmac", "v_dot2c", "v_fma_mixlo", "v_fma_mixhi", "v_writelane")) or self.dpp:
                self.rd |= R[0]
            elif base.startswith(("v_add_co", "v_sub_co", "v_addc_co")):
                self.wr = R[0] | R[1]
                self.rd = allr(R[2:])
            if base == "v_cndmask_b32" and len(ops) == 3:
                self.rd |= regs_of("vcc")
        elif mn.startswith("ds_"):
            self.cls = "ds"
            if mn.startswith(("ds_read", "ds_bpermute", "ds_swizzle", "ds_permute")):
                self.wr = R[0]
                self.rd = allr(R[1:])
            else:
                self.rd = allr(R)
        elif mn.startswith(("buffer_", "global_")):
            self.cls = "vmem"
            if mn in ("buffer_wbl2", "buffer_inv"):
                pass
            elif "load" in mn:
                if "lds" in flags or "_lds_" in mn:
                    self.rd = allr(R) | regs_of("m0")
                else:
                    self.wr = R[0]
                    self.rd = allr(R[1:])
            else:
                self.rd = allr(R)
                self.data = R[0] if mn.startswith("buffer_") else R[1]
                self.wide = mn.endswith(("x3", "x4"))
        elif mn.startswith(("s_load", "s_memtime", "s_memrealtime", "s_buffer_load", "s_atomic")):
            self.cls = "smem"
            self.wr = R[0]
            self.rd = allr(R[1:])
        elif mn.startswith("s_"):
            self.cls = "salu"
            if mn.startswith(("s_cmp", "s_cbranch", "s_branch", "s_waitcnt", "s_nop", "s_barrier", "s_endpgm",
                              "s_sleep", "s_setprio", "s_bitcmp")):
                self.rd = allr(R)
                if mn in ("s_cbranch_vccz", "s_cbranch_vccnz"):
                    self.rd |= regs_of("vcc")
            else:
                self.wr = set(R[0]) if R else set()
                self.rd = allr(R[1:])
                if mn.startswith(("s_addk", "s_mulk", "s_bitset")):
                    self.rd |= R[0]
                if "saveexec" in mn:
                    self.wr |= regs_of("exec")
        else:
            raise ValueError("unknown instruction: " + t)

    def is_trans(self):
        return self.mn.startswith(TRANS)

    def is_dot(self):
        return self.mn.startswith("v_dot")

    def states(self):
        if self.cls in ("label", "dir", "pseudo"):
            return 0
        if self.mn == "s_nop":
            return int(self.ops[0], 0) + 1
        return 1


def I(text, tok=None):
    return Inst(text, tok)


def waitvm(tok):
    i = Inst("@waitvm")
    i.tok = tok
    return i


def waitds(tok=None):
    i = Inst("@waitds")
    i.tok = tok
    return i


def insert_waits(insts):
    out = []
    vm = []
    lg = []
    seen_tokens = set()

    def emit_wait(nv, nl):
        nonlocal vm, lg
        parts = []
        if nv is not None:
            nv = min(nv, 63)
            if nv < len(vm):
                parts.append("vmcnt(%d)" % nv)
                vm = vm[len(vm) - nv:] if nv else []
        if nl is not None:
            if any(x.cls == "smem" for x in lg):
                nl = 0
            nl = min(nl, 15)
            if nl < len(lg):
                parts.append("lgkmcnt(%d)" % nl)
                lg = lg[len(lg) - nl:] if nl else []
        if parts:
            out.append(Inst("s_waitcnt " + " ".join(parts)))

    for ins in insts:
        if ins.cls == "pseudo":
            if ins.mn == "@waitvm":
                assert ins.tok in seen_tokens, "unknown token %r" % (ins.tok,)
                idx = [k for k, x in enumerate(vm) if x.tok == ins.tok]
                if idx:
                    emit_wait(len(vm) - 1 - idx[-1], None)
            elif ins.mn == "@waitds":
                if ins.tok is None:
                    emit_wait(None, 0)
                else:
                    assert ins.tok in seen_tokens, "unknown token %r" % (ins.tok,)
                    idx = [k for k, x in enumerate(lg) if x.tok == ins.tok]
                    if idx:
                        emit_wait(None, len(lg) - 1 - idx[-1])
            else:
                raise ValueError(ins.mn)
            continue
        if ins.mn == "s_waitcnt":
            m = re.search(r"vmcnt\((\d+)\)", ins.text)
            if m:
                n = int(m.group(1))
                vm = vm[len(vm) - n:] if n and n < len(vm) else ([] if n == 0 else vm)
            m = re.search(r"lgkmcnt\((\d+)\)", ins.text)
            if m:
                n = int(m.group(1))
                if n == 0:
                    lg = []
                elif not any(x.cls == "smem" for x in lg) and n < len(lg):
                    lg = lg[len(lg) - n:]
            out.append(ins)
            continue
        touch = ins.rd | ins.wr
        nv = nl = None
        if touch:
            for k in range(len(vm) - 1, -1, -1):
                if vm[k].wr & touch:
                    if ins.cls == "vmem" and not (vm[k].wr & ins.rd):
                        continue
                    nv = len(vm) - 1 - k
                    break
            for k in range(len(lg) - 1, -1, -1):
                if lg[k].wr & touch:
                    if ins.cls == "ds" and lg[k].cls == "ds" and not (lg[k].wr & ins.rd):
                        continue
                    nl = len(lg) - 1 - k
                    break
        if ins.cls == "vmem" and len(vm) >= 60:
            nv = 40 if nv is None else min(nv, 40)
        emit_wait(nv, nl)
        out.append(ins)
        if ins.tok is not None:
            seen_tokens.add(ins.tok)
        if ins.cls == "vmem":
            vm.append(ins)
            assert len(vm) <= 63, "too many outstanding vmem ops at: " + ins.text
        elif ins.cls in ("ds", "smem"):
            lg.append(ins)
    return out


def _vs(regs):
    return {r for r in regs if r[0] in "va"}


def _ss(regs):
    return {r for r in regs if r[0] == "s"}


def need_states(p, c):
    n = 0
    if p.cls == "mfma":
        big = {4: 8, 8: 12}[p.passes]
        if c.cls == "mfma":
            if p.wr & c.ab:
                n = max(n, big)
            if p.wr & c.srcc and not (p.wr == c.srcc and p.passes == c.passes):
                n = max(n, big - 2)
            if p.wr & c.wr and not (p.wr == c.srcc and p.passes == c.passes):
                n = max(n, big)
        elif c.cls in ("valu", "ds", "vmem"):
            if p.wr & (c.rd | c.wr):
                n = max(n, big)
            if c.cls == "valu" and p.srcc & c.wr:
                n = max(n, p.passes - 1)
    elif p.cls == "valu":
        pv, ps = _vs(p.wr), _ss(p.wr)
        if c.cls == "mfma":
            if pv & c.rd:
                n = max(n, 3 if p.is_dot() else 2)
            if ps & regs_of("exec"):
                n = max(n, 4)
        if c.cls == "valu":
            if pv & c.rd:
                if p.is_trans() and not c.is_trans():
                    n = max(n, 1)
                if c.dpp or c.mn.startswith("v_permlane"):
                    n = max(n, 2)
                if c.mn.startswith(("v_readlane", "v_readfirstlane")):
                    n = max(n, 1)
                if p.mn.startswith(("v_fma_mixhi", "v_fma_mixlo")) or "sdwa" in p.mn:
                    n = max(n, 1)
            if p.is_dot() and pv & (c.rd | c.wr):
                same = c.mn == p.mn
                src2 = regs_of(c.ops[3]) if same and len(c.ops) > 3 else set()
                ab = (regs_of(c.ops[1]) | regs_of(c.ops[2])) if same else set()
                if not same or (pv & ab) or not (pv & src2):
                    n = max(n, 3)
            if ps & c.rd:
                n = max(n, 4 if c.mn.startswith(("v_readlane", "v_writelane")) else 2)
        if c.cls in ("ds", "vmem") and p.is_dot() and pv & c.rd:
            n = max(n, 3)
        if c.cls == "vmem" and ps & c.rd:
            n = max(n, 5)
        if c.cls in ("salu", "smem") and ps & c.rd:
            n = max(n, 1)
    elif p.cls == "vmem":
        if p.wide and p.data & c.wr:
            n = max(n, 2 if c.cls in ("valu", "mfma") else 1)
    elif p.cls == "salu":
        if regs_of("m0") & p.wr and c.cls == "vmem" and regs_of("m0") & c.rd:
            n = max(n, 1)
    return n


def insert_nops(insts):
    out = []
    for c in insts:
        if c.cls in ("label", "dir"):
            out.append(c)
            continue
        dist = 0
        pad = 0
        for p in reversed(out):
            if dist >= 12:
                break
            if p.cls not in ("label", "dir"):
                n = need_states(p, c)
                if n > dist:
                    pad = max(pad, n - dist)
            dist += p.states()
        if pad:
            out.append(Inst("s_nop %d" % (pad - 1)))
        out.append(c)
    return out


def mix(main, fill, every=1, per=1, start=0, key=lambda i: i.cls == "mfma"):
    out = []
    fi = 0
    cnt = 0
    acc = 0.0
    for ins in main:
        out.append(ins)
        if key(ins):
            cnt += 1
            if cnt > start and (cnt - start) % every == 0:
                acc += per
                while acc >= 1 and fi < len(fill):
                    out.append(fill[fi])
                    if fill[fi].cls != "pseudo":
                        acc -= 1
                    fi += 1
    out.extend(fill[fi:])
    return out


class RegAlloc:
    def __init__(self, kind, n, reserved=()):
        self.kind = kind
        self.free = [True] * n
        for r in reserved:
            self.free[r] = False
        self.names = {}
        self.high = 0

    def alloc(self, name, n=1, align=None, at=None):
        if align is None:
            align = 1 if n == 1 else (2 if n == 2 else 4)
        assert name not in self.names, name
        rng = [at] if at is not None else range(0, len(self.free) - n + 1, align)
        for b in rng:
            if all(self.free[b:b + n]):
                for i in range(b, b + n):
                    self.free[i] = False
                self.names[name] = (b, n)
                self.high = max(self.high, b + n)
                return Reg(self.kind, b, n)
        raise RuntimeError("out of %s registers for %s (%d); live: %s" % (self.kind, name, n, self.names))

    def release(self, *names):
        for name in names:
            b, n = self.names.pop(name)
            for i in range(b, b + n):
                self.free[i] = True


class Reg:
    def __init__(self, kind, base, n):
        self.kind, self.base, self.n = kind, base, n

    def __getitem__(self, i):
        if isinstance(i, slice):
            a = i.start or 0
            b = self.n if i.stop is None else i.stop
            assert 0 <= a < b <= self.n, (a, b, self.n)
            return Reg(self.kind, self.base + a, b - a)
        assert 0 <= i < self.n, (i, self.n)
        return Reg(self.kind, self.base + i, 1)

    def q(self, i, w=4):
        return self[i * w:(i + 1) * w]

    def __str__(self):
        if self.n == 1:
            return "%s%d" % (self.kind, self.base)
        return "%s[%d:%d]" % (self.kind, self.base, self.base + self.n - 1)

    __repr__ = __str__

    def __format__(self, spec):
        return str(self)
```

```python
import sys, struct, os
sys.path.insert(0, os.path.dirname(os.path.abspath(__file__)))
from asmir import *

NAME = "adaLN_cond__sliding_local_dilated__mixer_channel_mlp__prompt"
STAMPS = "--stamps" in sys.argv

WO_OFF = 0x0
W1_OFF = 0x80000
W2_OFF = 0x1E0000
A2_OFF = 0x400000
A3_OFF = 0x600000
A4_OFF = 0x800000
ST_OFF = 0xE00000
MODP_OFF = 0xE80000
FLG_OFF = 0xEA0000
PREPF_OFF = FLG_OFF + 0x4000
EPOCH_OFF = FLG_OFF + 0x5000
DBG_OFF = 0xF00000
WS_SIZE = 0x1000000
OOB = 0x40000000
L_A = 0
L_SHUF = 81920
L_PREP = 131072
L_MODF = 147456
L_JOB = 159744
L_EB = 81920
L_SSC = 90112
L_ST = 98304
LDS_SIZE = 163840
A4_SLOTS = 36

def f2u(x):
    return struct.unpack("<I", struct.pack("<f", x))[0]

V = RegAlloc("v", 256)
S = RegAlloc("s", 102, reserved=(0, 1, 2))
A = Reg("a", 0, 256)
prog = []
_cur = [prog]

def e(text, tok=None):
    _cur[-1].append(I(text, tok))

def raw(ins):
    _cur[-1].append(ins)

class stream:
    def __enter__(self):
        self.l = []
        _cur.append(self.l)
        return self.l
    def __exit__(self, *a):
        _cur.pop()

def emit(l):
    _cur[-1].extend(l)

_lab = [0]
def label(p="L"):
    _lab[0] += 1
    return "%s_%d" % (p, _lab[0])

sW, sM, sGQ, sRB, sTAG, sBUD = [S.alloc(n) for n in ("w", "m", "gq", "rb", "tag", "bud")]
sKA = S.alloc("ka", 16, at=16)
sKB = S.alloc("kb", 8, at=32)
sKW = S.alloc("kw", 2, at=40)
rWS = S.alloc("rws", 4, at=12)
rX = S.alloc("rx", 4, at=44)
rWQ = S.alloc("rwq", 4, at=48)
rWM = S.alloc("rwm", 4, at=52)
rPS = S.alloc("rps", 4, at=56)
rSM = S.alloc("rsm", 4, at=60)
sT = S.alloc("t", 8, at=64)
sLN = S.alloc("ln", 8, at=72)
sCT = S.alloc("ct")
nstamp = [0]
if STAMPS:
    sSTt = S.alloc("stampt", 2, at=100)
    sST0 = S.alloc("stamp0", 2, at=98)
    vST = V.alloc("vstamps", at=255)
stamp_names = []

def stamp(name):
    if not STAMPS:
        return
    k = nstamp[0]
    nstamp[0] += 1
    stamp_names.append(name)
    if k == 0:
        e(f"s_memrealtime {sST0}")
        return
    e(f"s_memrealtime {sSTt}")
    if k == 1:
        e(f"v_writelane_b32 {vST}, {sST0[0]}, 0")
    e(f"v_writelane_b32 {vST}, {sSTt[0]}, {k}")
    e(f"s_memtime {sSTt}")
    e(f"v_writelane_b32 {vST}, {sSTt[0]}, {32+k}")

def srd(r, ptr, size):
    e(f"s_mov_b32 {r[0]}, {ptr[0]}")
    e(f"s_mov_b32 {r[1]}, {ptr[1]}")
    e(f"s_mov_b32 {r[2]}, {size:#x}" if isinstance(size, int) else f"s_mov_b32 {r[2]}, {size}")
    e(f"s_mov_b32 {r[3]}, 0x20000")

def poll(voff, soff, vtmp, width=1):
    L, D = label("poll"), label("pdone")
    e(f"{L}:")
    if width == 1:
        e(f"buffer_load_dword {vtmp[0]}, {voff}, {rWS}, {soff} offen sc1")
        e("s_waitcnt vmcnt(0)")
        e(f"v_cmp_ne_u32 vcc, {sTAG}, {vtmp[0]}")
    else:
        e(f"buffer_load_dwordx4 {vtmp[0:4]}, {voff}, {rWS}, {soff} offen sc1")
        e("s_waitcnt vmcnt(0)")
        for i in range(4):
            e(f"v_xor_b32 {vtmp[i]}, {sTAG}, {vtmp[i]}")
        e(f"v_or3_b32 {vtmp[0]}, {vtmp[0]}, {vtmp[1]}, {vtmp[2]}")
        e(f"v_or_b32 {vtmp[0]}, {vtmp[0]}, {vtmp[3]}")
        e(f"v_cmp_ne_u32 vcc, 0, {vtmp[0]}")
    e("s_nop 0")
    e(f"s_cbranch_vccz {D}")
    e(f"s_sub_u32 {sBUD}, {sBUD}, 1")
    e(f"s_cbranch_scc0 {L}")
    e(f"s_mov_b32 {sBUD}, 0")
    e(f"{D}:")

def swap16(a, b): e(f"v_permlane16_swap_b32 {a}, {b}")
def swap32(a, b): e(f"v_permlane32_swap_b32 {a}, {b}")
DPPM = "row_mask:0xf bank_mask:0xf"
def mfma(d, a, b, c): e(f"v_mfma_f32_16x16x32_bf16 {d}, {a}, {b}, {c}")

vT = V.alloc("tid", at=0)
e("s_cmp_ge_u32 s2, 256")
e("s_cbranch_scc1 L_end")
stamp("entry")
e(f"s_load_dwordx16 {sKA}, s[0:1], 0")
e(f"s_load_dwordx8 {sKB}, s[0:1], 64")
e(f"s_load_dwordx2 {sKW}, s[0:1], 96")
vL, vL16 = V.alloc("l"), V.alloc("l16")
t = V.alloc("tmp", 16)
vTag, vFl = V.alloc("vtag"), V.alloc("fl")
e(f"v_lshrrev_b32 {t[0]}, 6, {vT}")
e(f"v_and_b32 {vL}, 63, {vT}")
e(f"v_readfirstlane_b32 {sW}, {t[0]}")
e(f"v_lshlrev_b32 {vL16}, 4, {vL}")
e(f"s_getpc_b64 {sT[0:2]}")
e(f"s_lshr_b32 {sT[2]}, s2, 3")
e(f"s_lshl_b32 {sT[3]}, {sT[2]}, 11")
e(f"v_lshl_add_u32 {t[1]}, {vT}, 3, {sT[3]}")
e(f"v_min_u32 {t[1]}, CODE_LAST, {t[1]}")
e(f"global_load_dwordx2 {t[2:4]}, {t[1]}, {sT[0:2]}")
e(f"s_and_b32 {sM}, {sT[2]}, 7")
e(f"s_lshr_b32 {sGQ}, {sT[2]}, 3")
e(f"s_and_b32 {sRB}, s2, 7")
e(f"s_lshl2_add_u32 {sRB}, {sRB}, {sGQ}")
e(f"s_lshl2_add_u32 {sCT}, {sM}, {sW}")
e(f"s_mov_b32 {sBUD}, 400000")

vLo3, vHi3 = V.alloc("lo3"), V.alloc("hi3")
vI, vG = V.alloc("i"), V.alloc("g")
e(f"v_and_b32 {vLo3}, 7, {vL}")
e(f"v_lshrrev_b32 {vHi3}, 3, {vL}")
e(f"v_and_b32 {vI}, 15, {vL}")
e(f"v_lshrrev_b32 {vG}, 4, {vL}")

vJW, vJC = V.alloc("jw"), V.alloc("jc")
e(f"s_and_b32 {sT[0]}, s2, 3")
e(f"s_lshl2_add_u32 {sT[0]}, {sT[0]}, {sW}")
e(f"s_lshl_b32 {sT[1]}, {sT[0]}, 6")
e(f"s_mul_i32 {sT[0]}, {sT[0]}, {32*6144}")
e(f"s_lshr_b32 {sT[4]}, s2, 2")
e(f"s_lshl_b32 {sT[4]}, {sT[4]}, 7")
e(f"s_add_u32 {sT[0]}, {sT[0]}, {sT[4]}")
e("s_cmp_lt_u32 s2, 192")
e(f"s_cselect_b32 {sT[0]}, {sT[0]}, {OOB:#x}")
e(f"v_mul_u32_u24 {vJW}, {4*6144}, {vHi3}")
e(f"v_lshl_add_u32 {vJW}, {vLo3}, 4, {vJW}")
e(f"v_lshlrev_b32 {vJC}, 3, {vHi3}")
e("s_waitcnt lgkmcnt(0)")
stamp("kernarg")
srd(rWM, sKB[2:4], 512 * 6144)
srd(rSM, sKB[0:2], 1024)
jw = V.alloc("jwd", 16)
jc = V.alloc("jcd", 2)
e(f"buffer_load_dwordx2 {jc}, {vJC}, {rSM}, {sT[1]} offen")
for j in range(4):
    e(f"buffer_load_dwordx4 {jw.q(j)}, {vJW}, {rWM}, {sT[0]} offen")
    if j < 3:
        e(f"s_add_u32 {sT[0]}, {sT[0]}, 6144")
srd(rWS, sKW, WS_SIZE)
srd(rX, sKA[0:2], 2048 * 1024)
srd(rWQ, sKA[2:4], 512 * 3072)
e(f"s_add_u32 {sT[6]}, {sKW[0]}, {EPOCH_OFF:#x}")
e(f"s_addc_u32 {sT[7]}, {sKW[1]}, 0")
e(f"s_load_dword {sTAG}, {sT[6:8]}, 0")

X = V.alloc("x", 80)
sXO = S.alloc("xo")
e(f"s_lshl_b32 {sXO}, {sRB}, 16")
e(f"s_lshl_b32 {sT[0]}, {sW}, 12")
e(f"s_add_u32 {sXO}, {sXO}, {sT[0]}")
e(f"s_sub_u32 {sT[0]}, {sXO}, 16384")
e(f"s_cselect_b32 {sT[0]}, {OOB:#x}, {sT[0]}")
def xload(T, jj, so):
    e(f"buffer_load_dwordx4 {X.q(4*T+jj)}, {vL16}, {rX}, {so} offen offset:{jj*1024}")
for jj in range(4):
    xload(0, jj, sT[0])

sPSo, sPDo, sPDs, sPSt = [S.alloc(n) for n in ("pso", "pdo", "pds", "pst")]
e(f"s_lshl2_add_u32 {sT[0]}, s2, {sW}")
e(f"s_sub_u32 {sT[0]}, 1023, {sT[0]}")
Lw1, Lw2, Lpd = label("pw1"), label("pw2"), label("pdn")
e(f"s_mov_b32 {rPS[3]}, 0x20000")
e(f"s_cmp_ge_u32 {sT[0]}, 480")
e(f"s_cbranch_scc1 {Lw2}")
e(f"s_cmp_ge_u32 {sT[0]}, 128")
e(f"s_cbranch_scc1 {Lw1}")
e(f"s_mov_b32 {rPS[0]}, {sKA[4]}"); e(f"s_mov_b32 {rPS[1]}, {sKA[5]}"); e(f"s_mov_b32 {rPS[2]}, {512*1024}")
e(f"s_lshr_b32 {sT[1]}, {sT[0]}, 3"); e(f"s_and_b32 {sT[2]}, {sT[0]}, 7")
e(f"s_movk_i32 {sPSt}, 1024"); e(f"s_movk_i32 {sPDs}, 16384"); e(f"s_mov_b32 {sPDo}, {WO_OFF}")
e(f"s_branch {Lpd}")
e(f"{Lw1}:")
e(f"s_mov_b32 {rPS[0]}, {sKA[8]}"); e(f"s_mov_b32 {rPS[1]}, {sKA[9]}"); e(f"s_mov_b32 {rPS[2]}, {512*2752}")
e(f"s_sub_u32 {sT[0]}, {sT[0]}, 128")
e(f"s_and_b32 {sT[1]}, {sT[0]}, 15"); e(f"s_lshr_b32 {sT[2]}, {sT[0]}, 4")
e(f"s_movk_i32 {sPSt}, 2752"); e(f"s_movk_i32 {sPDs}, 16384"); e(f"s_mov_b32 {sPDo}, {W1_OFF}")
e(f"s_branch {Lpd}")
e(f"{Lw2}:")
e(f"s_mov_b32 {rPS[0]}, {sKA[12]}"); e(f"s_mov_b32 {rPS[1]}, {sKA[13]}"); e(f"s_mov_b32 {rPS[2]}, {1376*1024}")
e(f"s_sub_u32 {sT[0]}, {sT[0]}, 480")
e(f"s_lshr_b32 {sT[1]}, {sT[0]}, 3"); e(f"s_and_b32 {sT[2]}, {sT[0]}, 7")
e(f"s_movk_i32 {sPSt}, 1024"); e(f"s_mov_b32 {sPDs}, {43*1024}")
e(f"s_cmp_lt_u32 {sT[0]}, 344")
e(f"s_cselect_b32 {sPDo}, {W2_OFF}, {OOB:#x}")
e(f"{Lpd}:")
e(f"s_mul_i32 {sPSo}, {sT[1]}, {sPSt}")
e(f"s_lshl_b32 {sPSo}, {sPSo}, 5")
e(f"s_lshl_b32 {sT[3]}, {sT[2]}, 7")
e(f"s_add_u32 {sPSo}, {sPSo}, {sT[3]}")
e(f"s_mul_i32 {sT[3]}, {sT[2]}, {sPDs}")
e(f"s_lshl_b32 {sT[3]}, {sT[3]}, 2")
e(f"s_lshl_b32 {sT[1]}, {sT[1]}, 10")
e(f"s_add_u32 {sPDo}, {sPDo}, {sT[3]}")
e(f"s_add_u32 {sPDo}, {sPDo}, {sT[1]}")
vSw = V.alloc("sw")
e(f"v_and_b32 {t[0]}, 1, {vG}")
e(f"v_lshlrev_b32 {t[0]}, 5, {t[0]}")
e(f"v_lshlrev_b32 {vSw}, 4, {vLo3}")
e(f"v_xor_b32 {vSw}, {vSw}, {t[0]}")
vP0, vP1 = V.alloc("p0"), V.alloc("p1")
e(f"v_mul_lo_u32 {t[0]}, {vHi3}, {sPSt}")
e(f"v_add_u32 {vP0}, {t[0]}, {vSw}")
e(f"v_xor_b32 {t[1]}, 64, {vSw}")
e(f"v_add_u32 {vP1}, {t[0]}, {t[1]}")
e(f"s_lshl_b32 {sT[0]}, {sW}, 12")
e(f"s_add_u32 {sT[0]}, {sT[0]}, {L_PREP}")
e(f"s_lshl_b32 {sT[1]}, {sPSt}, 3")
for j in range(4):
    e(f"s_add_u32 m0, {sT[0]}, {j*1024}")
    e(f"buffer_load_dwordx4 {vP1 if j & 1 else vP0}, {rPS}, {sPSo} offen lds", tok=f"prep{j}")
    if j < 3:
        e(f"s_add_u32 {sPSo}, {sPSo}, {sT[1]}")
V.release("p0", "p1")

js = V.alloc("js", 8)
ja = V.alloc("ja", 8)
e(f"v_lshlrev_b32 {t[0]}, 16, {jc[0]}")
e(f"v_and_b32 {t[1]}, 0xffff0000, {jc[0]}")
e(f"v_lshlrev_b32 {t[2]}, 16, {jc[1]}")
e(f"v_and_b32 {t[3]}, 0xffff0000, {jc[1]}")
for j in range(4): e(f"v_mul_f32 {t[4+j]}, {f2u(-1.4426950408889634):#x}, {t[j]}")
for j in range(4): e(f"v_exp_f32 {t[4+j]}, {t[4+j]}")
for j in range(4): e(f"v_add_f32 {t[4+j]}, 1.0, {t[4+j]}")
for j in range(4): e(f"v_rcp_f32 {t[4+j]}, {t[4+j]}")
for j in range(4): e(f"v_mul_f32 {t[j]}, {t[j]}, {t[4+j]}")
for j in range(4):
    e(f"v_cvt_pk_bf16_f32 {js[2*j]}, {t[j]}, 0")
    e(f"v_cvt_pk_bf16_f32 {js[2*j+1]}, 0, {t[j]}")
for j in range(4):
    for i in range(4):
        for h in range(2):
            c = "0" if j == 0 else ja[2*i+h]
            e(f"v_dot2_f32_bf16 {ja[2*i+h]}, {jw[4*j+i]}, {js[2*j+h]}, {c}")
for i in range(4): swap32(ja[i], ja[4+i])
for i in range(4): e(f"v_add_f32 {ja[i]}, {ja[i]}, {ja[4+i]}")
e(f"v_lshrrev_b32 {t[0]}, 5, {vL}")
e(f"v_lshl_add_u32 {t[0]}, {vLo3}, 1, {t[0]}")
e(f"v_lshlrev_b32 {t[0]}, 8, {t[0]}")
e(f"v_and_b32 {t[1]}, 3, {vHi3}")
e(f"v_lshl_add_u32 {t[0]}, {t[1]}, 4, {t[0]}")
e(f"s_lshl_b32 {sT[0]}, {sW}, 6")
e(f"s_add_u32 {sT[0]}, {sT[0]}, {L_JOB}")
e(f"v_add_u32 {t[0]}, {sT[0]}, {t[0]}")
e(f"ds_write_b128 {t[0]}, {ja[0:4]}")
for T in range(1, 3):
    for jj in range(4):
        xload(T, jj, sXO)
    e(f"s_add_u32 {sXO}, {sXO}, 16384")
raw(waitds())
e("s_barrier")
e(f"v_lshlrev_b32 {t[0]}, 6, {vL}")
e(f"v_add_u32 {t[0]}, {L_JOB}, {t[0]}")
for k in range(4):
    e(f"ds_read_b128 {jw.q(k)}, {t[0]} offset:{k*16}")
e(f"s_add_u32 {sTAG}, {sTAG}, 0x01010101")
for i in range(4): e(f"v_add_f32 {jw[i]}, {jw[i]}, {jw[4+i]}")
for i in range(4): e(f"v_add_f32 {jw[8+i]}, {jw[8+i]}, {jw[12+i]}")
for i in range(4): e(f"v_add_f32 {jw[i]}, {jw[i]}, {jw[8+i]}")
for i in range(4): e(f"v_add_f32_dpp {jw[i]}, {jw[i]}, {jw[i]} quad_perm:[1,0,3,2] {DPPM}")
for i in range(4): e(f"v_add_f32_dpp {jw[i]}, {jw[i]}, {jw[i]} quad_perm:[2,3,0,1] {DPPM}")
e(f"v_mov_b32 {vTag}, {sTAG}")
for i in range(4):
    e(f"s_mov_b32 {sT[1]}, {0x07060500 + i:#x}")
    e(f"v_perm_b32 {jw[i]}, {jw[i]}, {vTag}, {sT[1]}")
e(f"s_and_b32 {sT[0]}, s2, 3")
e(f"s_mul_i32 {sT[0]}, {sT[0]}, {3072*4}")
e(f"s_lshr_b32 {sT[1]}, s2, 2")
e(f"s_lshl_b32 {sT[1]}, {sT[1]}, 8")
e(f"s_add_u32 {sT[0]}, {sT[0]}, {sT[1]}")
e(f"s_add_u32 {sT[0]}, {sT[0]}, {MODP_OFF:#x}")
e("s_cmp_lt_u32 s2, 192")
e(f"s_cselect_b32 {sT[0]}, {sT[0]}, {OOB:#x}")
e(f"s_cmp_eq_u32 {sW}, 0")
e(f"s_cselect_b32 {sT[0]}, {sT[0]}, {OOB:#x}")
e(f"v_and_b32 {t[1]}, 3, {vL}")
e(f"v_lshlrev_b32 {t[1]}, 28, {t[1]}")
e(f"v_lshl_add_u32 {t[1]}, {vL}, 2, {t[1]}")
e(f"buffer_store_dwordx4 {jw[0:4]}, {t[1]}, {rWS}, {sT[0]} offen sc1")
stamp("modpub")
for T in range(3, 5):
    for jj in range(4):
        xload(T, jj, sXO)
    if T < 4:
        e(f"s_add_u32 {sXO}, {sXO}, 16384")
V.release("js", "ja", "jcd", "jw", "jc")
S.release("xo")

vTR = V.alloc("tr")
e(f"v_lshrrev_b32 {t[0]}, 2, {vI}")
e(f"v_lshl_add_u32 {t[0]}, {vG}, 3, {t[0]}")
e(f"v_lshlrev_b32 {vTR}, 7, {t[0]}")
e(f"v_lshrrev_b32 {t[0]}, 3, {vI}")
e(f"v_and_b32 {t[1]}, 1, {vG}")
e(f"v_lshl_add_u32 {t[0]}, {t[1]}, 1, {t[0]}")
e(f"v_lshl_add_u32 {vTR}, {t[0]}, 5, {vTR}")
e(f"v_and_b32 {t[0]}, 3, {vI}")
e(f"v_lshl_add_u32 {vTR}, {t[0]}, 3, {vTR}")
e(f"s_lshl_b32 {sT[0]}, {sW}, 12")
e(f"s_add_u32 {sT[0]}, {sT[0]}, {L_PREP}")
for c in range(4):
    e(f"v_xor_b32 {t[c]}, {c*32}, {vTR}") if c else e(f"v_mov_b32 {t[0]}, {vTR}")
for c in range(4):
    e(f"v_add_u32 {t[c]}, {sT[0]}, {t[c]}")
raw(waitvm("prep3"))
for c in range(4):
    for h in range(2):
        e(f"ds_read_b64_tr_b16 {jw[4*c+2*h:4*c+2*h+2]}, {t[c]} offset:{h*512}")
for c in range(4):
    e(f"buffer_store_dwordx4 {jw.q(c)}, {vL16}, {rWS}, {sPDo} offen sc1", tok=f"pst{c}")
    if c < 3:
        e(f"s_add_u32 {sPDo}, {sPDo}, {sPDs}")
V.release("jwd")
S.release("pso", "pdo", "pds", "pst")

vWQ = V.alloc("wq")
e(f"s_lshl_b32 {sT[0]}, {sW}, 3")
e(f"v_add_u32 {t[0]}, {sT[0]}, {vHi3}")
e(f"v_mul_u32_u24 {vWQ}, 3072, {t[0]}")
e(f"s_and_b32 {sT[0]}, {sW}, 1")
e(f"s_lshl_b32 {sT[0]}, {sT[0]}, 6")
e(f"v_xor_b32 {t[0]}, {sT[0]}, {vSw}")
e(f"s_lshl_b32 {sT[0]}, {sM}, 7")
e(f"v_add3_u32 {vWQ}, {vWQ}, {t[0]}, {sT[0]}")
V.release("sw")
sQ = S.alloc("q", 4)
sQt = S.alloc("qt")
for q in range(4):
    e(f"s_xor_b32 {sQ[q]}, {sGQ}, {q}")
    e(f"s_mul_i32 {sQ[q]}, {sQ[q]}, {32*3072}")
def wq_reg(slot, p):
    return A.q(slot * 3 + p)
order = [4 * r for r in range(4)] + [4 * r + q for r in range(4) for q in range(1, 4)]
with stream() as WQL:
    for slot in order:
        r, q = slot >> 2, slot & 3
        so = sQ[q]
        if r:
            e(f"s_add_u32 {sQt}, {sQ[q]}, {r*128*3072}")
            so = sQt
        for p in range(3):
            e(f"buffer_load_dwordx4 {wq_reg(slot, p)}, {vWQ}, {rWQ}, {so} offen offset:{p*1024}")

vOnes, vLo1, vHi1 = V.alloc("ones"), V.alloc("lo1"), V.alloc("hi1")
st = V.alloc("st", 8)
with stream() as LN:
    e(f"v_mov_b32 {vOnes}, 0x3f803f80")
    e(f"v_mov_b32 {vLo1}, 0x3f80")
    e(f"v_mov_b32 {vHi1}, 0x3f800000")
    for T in range(5):
        for i in range(4):
            for jj in range(4):
                x = X[16*T + 4*jj + i]
                e(f"v_dot2_f32_bf16 {st[jj]}, {x}, {vOnes}, {'0' if i == 0 else st[jj]}")
                e(f"v_dot2_f32_bf16 {st[4+jj]}, {x}, {x}, {'0' if i == 0 else st[4+jj]}")
        for s in (0, 4):
            swap32(st[s], st[s+2]); swap32(st[s+1], st[s+3])
        for s in (0, 4):
            e(f"v_add_f32 {st[s]}, {st[s]}, {st[s+2]}")
            e(f"v_add_f32 {st[s+1]}, {st[s+1]}, {st[s+3]}")
        for s in (0, 4): swap16(st[s], st[s+1])
        for s in (0, 4): e(f"v_add_f32 {st[s]}, {st[s]}, {st[s+1]}")
        for sh in (8, 4, 2, 1):
            for s in (0, 4):
                e(f"v_add_f32_dpp {st[s]}, {st[s]}, {st[s]} row_ror:{sh} {DPPM}")
        e(f"v_mul_f32 {st[0]}, {f2u(-1.0/512):#x}, {st[0]}")
        e(f"v_mul_f32 {st[4]}, {f2u(1.0/512):#x}, {st[4]}")
        e(f"v_fma_f32 {st[4]}, -{st[0]}, {st[0]}, {st[4]}")
        e(f"v_max_f32 {st[4]}, 0, {st[4]}")
        e(f"v_add_f32 {st[4]}, {f2u(1e-5):#x}, {st[4]}")
        e(f"v_rsq_f32 {st[4]}, {st[4]}")
        for jj in range(4): e(f"v_readlane_b32 {sLN[jj]}, {st[0]}, {16*jj}")
        for jj in range(4): e(f"v_readlane_b32 {sLN[4+jj]}, {st[4]}, {16*jj}")
        for jj in range(4):
            d = t[8*(jj & 1):8*(jj & 1)+8]
            for i in range(4):
                x = X[16*T + 4*jj + i]
                e(f"v_dot2_f32_bf16 {d[2*i]}, {x}, {vLo1}, {sLN[jj]}")
                e(f"v_dot2_f32_bf16 {d[2*i+1]}, {x}, {vHi1}, {sLN[jj]}")
            for i in range(4):
                e(f"v_fma_mixlo_f16 {X[16*T+4*jj+i]}, {d[2*i]}, {sLN[4+jj]}, 0")
            for i in range(4):
                e(f"v_fma_mixhi_f16 {X[16*T+4*jj+i]}, {d[2*i+1]}, {sLN[4+jj]}, 0")
if "--sepln" in sys.argv:
    stamp("preln"); e("s_waitcnt vmcnt(0)"); stamp("xarr"); emit(LN); stamp("lnonly"); emit(WQL); stamp("wqiss"); e("s_waitcnt vmcnt(0)")
else:
    emit(mix(LN, WQL, every=10, per=1, key=lambda i: i.cls == "valu"))
V.release("st", "lo1", "hi1")
S.release("q", "qt")
V.release("wq")
stamp("ln1")

def modproc(base, addone_waves_hi, packed):
    mp = V.alloc("mp", 16)
    L, D = label("mpoll"), label("mdone")
    e(f"s_lshl_b32 {sT[0]}, {sW}, 10")
    e(f"s_add_u32 {sT[0]}, {sT[0]}, {MODP_OFF + base*4:#x}")
    for k in range(1, 4):
        e(f"s_add_u32 {sT[k]}, {sT[0]}, {k*3072*4}")
    for i in range(4):
        e(f"s_bfe_u32 {sT[4+i]}, {sTAG}, {0x80000 + 8*i:#x}")
    e(f"{L}:")
    for k in range(4):
        e(f"buffer_load_dwordx4 {mp.q(k)}, {vL16}, {rWS}, {sT[k]} offen sc1")
    e("s_waitcnt vmcnt(0)")
    for k in range(16):
        e(f"v_xor_b32 {mp[k]}, {sT[4 + (k & 3)]}, {mp[k]}")
    for k in range(5):
        e(f"v_or3_b32 {t[k]}, {mp[3*k]}, {mp[3*k+1]}, {mp[3*k+2]}")
    e(f"v_or3_b32 {t[0]}, {t[0]}, {t[1]}, {t[2]}")
    e(f"v_or3_b32 {t[3]}, {t[3]}, {t[4]}, {mp[15]}")
    e(f"v_or_b32 {t[0]}, {t[0]}, {t[3]}")
    e(f"v_and_b32 {t[0]}, 0xff, {t[0]}")
    e(f"v_cmp_ne_u32 vcc, 0, {t[0]}")
    e("s_nop 0")
    e(f"s_cbranch_vccz {D}")
    e(f"s_sub_u32 {sBUD}, {sBUD}, 1")
    e(f"s_cbranch_scc0 {L}")
    e(f"s_mov_b32 {sBUD}, 0")
    e(f"{D}:")
    for i in range(4): e(f"v_add_f32 {mp[i]}, {mp[i]}, {mp[4+i]}")
    for i in range(4): e(f"v_add_f32 {mp[8+i]}, {mp[8+i]}, {mp[12+i]}")
    for i in range(4): e(f"v_add_f32 {mp[i]}, {mp[i]}, {mp[8+i]}")
    e(f"v_cvt_pk_bf16_f32 {mp[4]}, {mp[0]}, {mp[1]}")
    e(f"v_cvt_pk_bf16_f32 {mp[5]}, {mp[2]}, {mp[3]}")
    def unpack():
        e(f"v_lshlrev_b32 {mp[0]}, 16, {mp[4]}")
        e(f"v_and_b32 {mp[1]}, 0xffff0000, {mp[4]}")
        e(f"v_lshlrev_b32 {mp[2]}, 16, {mp[5]}")
        e(f"v_and_b32 {mp[3]}, 0xffff0000, {mp[5]}")
    unpack()
    if addone_waves_hi is not None:
        e(f"s_cmp_ge_u32 {sW}, 2")
        e(f"s_cselect_b32 {sT[0]}, 1.0, 0" if addone_waves_hi else f"s_cselect_b32 {sT[0]}, 0, 1.0")
        for i in range(4): e(f"v_add_f32 {mp[i]}, {sT[0]}, {mp[i]}")
        e(f"v_cvt_pk_bf16_f32 {mp[4]}, {mp[0]}, {mp[1]}")
        e(f"v_cvt_pk_bf16_f32 {mp[5]}, {mp[2]}, {mp[3]}")
        unpack()
    e(f"v_lshlrev_b32 {t[0]}, 4, {vT}")
    e(f"v_add_u32 {t[0]}, {L_MODF + base*4}, {t[0]}")
    e(f"ds_write_b128 {t[0]}, {mp[0:4]}")
    if packed:
        e(f"v_lshlrev_b32 {t[1]}, 3, {vT}")
        e(f"v_add_u32 {t[1]}, {L_EB + base*2}, {t[1]}")
        e(f"ds_write_b64 {t[1]}, {mp[4:6]}")
    V.release("mp")

modproc(0, True, False)
stamp("modgot")
raw(waitds())
e("s_barrier")
e(f"s_lshl_b32 {sT[0]}, s2, 2")
e(f"s_add_u32 {sT[0]}, {sT[0]}, {PREPF_OFF:#x}")
e(f"s_cmp_eq_u32 {sW}, 0")
e(f"s_cselect_b32 {sT[0]}, {sT[0]}, {OOB:#x}")
vFs = V.alloc("fs")
e(f"v_lshlrev_b32 {vFs}, 24, {vL}")
e(f"buffer_store_dword {vTag}, {vFs}, {rWS}, {sT[0]} offen sc1")
GS = V.alloc("gs", 16)
e(f"v_lshlrev_b32 {t[0]}, 5, {vL}")
e(f"v_add_u32 {t[0]}, {L_MODF}, {t[0]}")
for k in range(2):
    e(f"ds_read_b128 {GS.q(k)}, {t[0]} offset:{k*16}")
    e(f"ds_read_b128 {GS.q(2+k)}, {t[0]} offset:{2048 + k*16}")
vAW = V.alloc("aw", 4)
e(f"s_xor_b32 {sT[0]}, {sGQ}, {sW}")
e(f"s_lshl_b32 {sT[0]}, {sT[0]}, 6")
e(f"s_lshl_b32 {sT[1]}, {sW}, 12")
for jj in range(4):
    e(f"s_xor_b32 {sT[2]}, {sT[0]}, {jj*16}")
    e(f"s_add_u32 {sT[3]}, {sT[1]}, {jj*1024}")
    e(f"v_xor_b32 {vAW[jj]}, {sT[2]}, {vL16}")
    e(f"v_add_u32 {vAW[jj]}, {sT[3]}, {vAW[jj]}")
for T in range(5):
    if T == 4:
        for jj in range(4): e(f"v_add_u32 {vAW[jj]}, 0x10000, {vAW[jj]}")
    for jj in range(4):
        d = t[8*(jj & 1):8*(jj & 1)+8]
        x = X.q(4*T + jj)
        for i in range(4):
            e(f"v_fma_mix_f32 {d[2*i]}, {x[i]}, {GS[8+2*i]}, {GS[2*i]} op_sel_hi:[1,0,0]")
            e(f"v_fma_mix_f32 {d[2*i+1]}, {x[i]}, {GS[8+2*i+1]}, {GS[2*i+1]} op_sel:[1,0,0] op_sel_hi:[1,0,0]")
        for i in range(4):
            e(f"v_cvt_pk_bf16_f32 {x[i]}, {d[2*i]}, {d[2*i+1]}")
        e(f"ds_write_b128 {vAW[jj]}, {x} offset:{(T & 3)*16384}")
V.release("gs", "aw", "x")
stamp("xform")

vSHw, vSHr = V.alloc("shw"), V.alloc("shr")
e(f"s_lshl_b32 {sT[0]}, {sW}, 10")
e(f"s_add_u32 {sT[0]}, {sT[0]}, {L_SHUF}")
e(f"v_add_u32 {vSHw}, {sT[0]}, {vL16}")
e(f"s_lshl_b32 {sT[0]}, {sW}, 5")
e(f"v_xor_b32 {vSHr}, {sT[0]}, {vTR}")
e(f"v_add_u32 {vSHr}, {L_SHUF}, {vSHr}")
V.release("tr")
for ch in range(8):
    b = (ch & 1) * 24576
    for k in range(6):
        e(f"ds_write_b128 {vSHw}, {A.q(6*ch+k)} offset:{b + k*4096}")
    raw(waitds())
    e("s_barrier")
    for k in range(6):
        for h in range(2):
            e(f"ds_read_b64_tr_b16 {A.q(6*ch+k)[2*h:2*h+2]}, {vSHr} offset:{b + k*4096 + h*512}")
V.release("shw", "shr")
stamp("shuf")

e(f"s_mov_b32 {sT[0]}, {PREPF_OFF:#x}")
poll(vL16, sT[0], t, 4)
e(f"s_or_b32 {sT[0]}, s2, {sW}")
e(f"s_cselect_b32 {sT[0]}, {OOB:#x}, {EPOCH_OFF:#x}")
e(f"buffer_store_dword {vTag}, {vFs}, {rWS}, {sT[0]} offen sc1")
stamp("prepok")

sB = S.alloc("b", 3)
def bload(dst, so, k):
    e(f"buffer_load_dwordx4 {dst}, {vL16}, {rWS}, {so} offen offset:{(k & 3)*1024}")
    if (k & 3) == 3:
        e(f"s_add_u32 {so}, {so}, 4096")
BWO = A[192:256]
with stream() as BWOL:
    e(f"s_lshl_b32 {sB[0]}, {sCT}, 14")
    for ks in range(16):
        bload(BWO.q(ks), sB[0], ks)
sC2 = S.alloc("c2")
with stream() as B1S:
    e(f"s_lshl_b32 {sB[0]}, {sCT}, 14")
    e(f"s_add_u32 {sB[0]}, {sB[0]}, {W1_OFF:#x}")
    e(f"s_add_u32 {sB[1]}, {sB[0]}, {32*16384:#x}")
    e(f"s_lshl_b32 {sC2}, {sW}, 3")
    e(f"s_add_u32 {sC2}, {sC2}, {sM}")
    e(f"s_add_u32 {sC2}, {sC2}, 64")
    e(f"s_lshl_b32 {sB[2]}, {sC2}, 14")
    e(f"s_add_u32 {sB[2]}, {sB[2]}, {W1_OFF:#x}")
    e(f"s_cmp_lt_u32 {sC2}, 86")
    e(f"s_cselect_b32 {sB[2]}, {sB[2]}, {OOB:#x}")
def b1_loads(ks):
    for c in range(3):
        bload(A.q(ks*3 + c), sB[c], ks)

accQ, accK, accV = V.alloc("accq", 16), V.alloc("acck", 20), V.alloc("accv", 20)
AF = V.alloc("af", 40)
vAR = V.alloc("ar", 8)
e(f"v_xor_b32 {t[0]}, {vI}, {vG}")
e(f"v_lshlrev_b32 {t[0]}, 4, {t[0]}")
e(f"v_lshl_add_u32 {t[0]}, {vI}, 10, {t[0]}")
for j in range(4):
    e(f"v_xor_b32 {vAR[j]}, {j*64}, {t[0]}")
    e(f"v_add_u32 {vAR[4+j]}, 0x10000, {vAR[j]}")
emit(BWOL)
emit(B1S)
def p1_reads(s):
    for T in range(5):
        a = vAR[(s & 3) + (4 if T == 4 else 0)]
        e(f"ds_read_b128 {AF.q((s & 1)*5 + T)}, {a} offset:{(T & 3)*16384 + (s >> 2)*256}")
p1_reads(0)
for s in range(16):
    if s < 15:
        p1_reads(s + 1)
    for T in range(5):
        af = AF.q((s & 1)*5 + T)
        mfma(accK.q(T), wq_reg(s, 1), af, 0 if s == 0 else accK.q(T))
        mfma(accV.q(T), af, wq_reg(s, 2), 0 if s == 0 else accV.q(T))
        if T:
            mfma(accQ.q(T-1), wq_reg(s, 0), af, 0 if s == 0 else accQ.q(T-1))
    b1_loads(s)
V.release("af", "ar")
stamp("p1")

NEG = f2u(-1e30)
MC, MP, MP1, PM = V.alloc("mc", 4), V.alloc("mpv", 4), V.alloc("mp1", 4), V.alloc("pm", 4)
vNeg = V.alloc("neg")
e(f"v_mov_b32 {vNeg}, {NEG:#x}")
e(f"v_and_b32 {t[0]}, 1, {vI}")
e(f"v_lshlrev_b32 {t[1]}, 4, {t[0]}")
e(f"v_mov_b32 {t[2]}, 0xffff")
e(f"v_lshlrev_b32 {t[1]}, {t[1]}, {t[2]}")
e(f"v_lshl_add_u32 {t[2]}, {vG}, 2, {t[0]}")
for d in range(2):
    if d:
        e(f"v_add_u32 {t[2]}, 2, {t[2]}")
    e(f"v_cmp_le_u32 vcc, {t[2]}, {vI}")
    e(f"v_cndmask_b32 {PM[2+d]}, 0, {t[1]}, vcc")
    e(f"v_xor_b32 {PM[d]}, {PM[2+d]}, {t[1]}")
for d in range(2):
    for b in range(2):
        for (M, pm) in ((MP, PM[d]), (MC, PM[2+d])):
            e(f"v_and_b32 {t[3]}, {0xffff << (16*b):#x}, {pm}")
            e(f"v_cmp_eq_u32 vcc, 0, {t[3]}")
            e(f"v_cndmask_b32 {M[2*d+b]}, 0, {vNeg}, vcc")
e(f"s_cmp_eq_u32 {sRB}, 0")
e(f"s_cselect_b32 {sT[0]}, {NEG:#x}, 0")
for r in range(4):
    e(f"v_min_f32 {MP1[r]}, {sT[0]}, {MP[r]}")
ON4 = V.alloc("on4", 4)
for r in range(4): e(f"v_mov_b32 {ON4[r]}, {vOnes}")
Qp, Kp, Vp = V.alloc("qp", 8), V.alloc("kp", 10, align=2), V.alloc("vp", 10, align=2)
for T in range(5):
    for d in range(2):
        e(f"v_cvt_pk_bf16_f32 {Kp[2*T+d]}, {accK[4*T+2*d]}, {accK[4*T+2*d+1]}")
    if T:
        for d in range(2):
            e(f"v_cvt_pk_bf16_f32 {Qp[2*(T-1)+d]}, {accQ[4*(T-1)+2*d]}, {accQ[4*(T-1)+2*d+1]}")
SC = V.alloc("sc", 32)
for q in range(4):
    e(f"v_mfma_f32_16x16x16_bf16 {SC[8*q:8*q+4]}, {Kp[2*q:2*q+2]}, {Qp[2*q:2*q+2]}, {MP1 if q == 0 else MP}")
    e(f"v_mfma_f32_16x16x16_bf16 {SC[8*q+4:8*q+8]}, {Kp[2*q+2:2*q+4]}, {Qp[2*q:2*q+2]}, {MC}")
for T in range(5):
    for d in range(2):
        e(f"v_cvt_pk_bf16_f32 {Vp[2*T+d]}, {accV[4*T+2*d]}, {accV[4*T+2*d+1]}")
E_ = V.alloc("e", 8); MX = V.alloc("mx", 4)
for q in range(4):
    for d in range(2):
        e(f"v_max3_f32 {E_[2*q+d]}, {SC[8*q+2*d]}, {SC[8*q+2*d+1]}, {SC[8*q+4+2*d]}")
for q in range(4):
    for d in range(2):
        e(f"v_max_f32 {E_[2*q+d]}, {E_[2*q+d]}, {SC[8*q+4+2*d+1]}")
for q in range(4):
    e(f"v_max_f32 {MX[q]}, {E_[2*q]}, {E_[2*q+1]}")
swap32(MX[0], MX[2]); swap32(MX[1], MX[3])
e(f"v_max_f32 {MX[0]}, {MX[0]}, {MX[2]}"); e(f"v_max_f32 {MX[1]}, {MX[1]}, {MX[3]}")
swap16(MX[0], MX[1])
e(f"v_max_f32 {MX[0]}, {MX[0]}, {MX[1]}")
SCL = 0.25 * 1.4426950408889634
e(f"v_mul_f32 {MX[0]}, {f2u(SCL):#x}, {MX[0]}")
def allgather(R):
    e(f"v_mov_b32 {R[2]}, {R[0]}")
    swap32(R[0], R[2])
    e(f"v_mov_b32 {R[1]}, {R[0]}"); e(f"v_mov_b32 {R[3]}, {R[2]}")
    swap16(R[0], R[1]); swap16(R[2], R[3])
allgather(MX)
e(f"s_mov_b32 {sT[0]}, {f2u(SCL):#x}")
for q in range(4):
    for d in range(2):
        e(f"v_fma_f32 {E_[2*q+d]}, {E_[2*q+d]}, {sT[0]}, -{MX[q]}")
for k in range(8): e(f"v_exp_f32 {E_[k]}, {E_[k]}")
for k in range(8): e(f"v_cvt_pk_bf16_f32 {E_[k]}, {E_[k]}, {E_[k]}")
PP = accQ
for q in range(4):
    for d in range(2):
        e(f"v_and_b32 {PP[4*q+d]}, {E_[2*q+d]}, {PM[d]}")
        e(f"v_and_b32 {PP[4*q+2+d]}, {E_[2*q+d]}, {PM[2+d]}")
for q in range(4):
    mfma(SC[8*q:8*q+4], Vp[2*q:2*q+4], PP.q(q), 0)
    mfma(SC[8*q+4:8*q+8], ON4, PP.q(q), 0)
for q in range(4): e(f"v_rcp_f32 {MX[q]}, {SC[8*q+4]}")
for q in range(4):
    for r in range(4):
        e(f"v_mul_f32 {SC[8*q+r]}, {SC[8*q+r]}, {MX[q]}")

vF16, vF43 = V.alloc("f16"), V.alloc("f43")
e(f"v_lshrrev_b32 {t[0]}, 1, {vG}")
e(f"v_lshlrev_b32 {t[0]}, 8, {t[0]}")
e(f"v_lshl_add_u32 {t[0]}, {vI}, 4, {t[0]}")
e(f"v_and_b32 {t[1]}, 1, {vG}")
e(f"v_lshl_add_u32 {vF16}, {t[1]}, 14, {t[0]}")
e(f"v_mul_u32_u24 {t[1]}, {43*1024}, {t[1]}")
e(f"v_add_u32 {vF43}, {t[1]}, {t[0]}")

def pack_pair(dst, a, b):
    e(f"v_cvt_pk_bf16_f32 {dst[0]}, {a[0]}, {a[1]}")
    e(f"v_cvt_pk_bf16_f32 {dst[1]}, {a[2]}, {a[3]}")
    e(f"v_cvt_pk_bf16_f32 {dst[2]}, {b[0]}, {b[1]}")
    e(f"v_cvt_pk_bf16_f32 {dst[3]}, {b[2]}, {b[3]}")
    swap16(dst[0], dst[2]); swap16(dst[1], dst[3])

def frag_soff(dst, ct, base, KS):
    e(f"s_mul_i32 {dst}, {sRB}, {4*KS*1024}")
    e(f"s_lshl_b32 {sT[7]}, {ct}, 9")
    e(f"s_add_u32 {dst}, {dst}, {sT[7]}")
    e(f"s_add_u32 {dst}, {dst}, {base:#x}")

e(f"v_and_b32 {vFl}, 31, {vL}")
e(f"v_lshlrev_b32 {vFl}, 2, {vFl}")
def flag_set(phase, tok):
    raw(waitvm(tok))
    e(f"s_lshl_b32 {sT[0]}, {sRB}, 7")
    e(f"s_lshl2_add_u32 {sT[0]}, {sCT}, {sT[0]}")
    e(f"s_add_u32 {sT[0]}, {sT[0]}, {FLG_OFF + phase*4096:#x}")
    e(f"buffer_store_dword {vTag}, {vFs}, {rWS}, {sT[0]} offen sc1")
def flag_wait(phase):
    e(f"s_lshl_b32 {sT[0]}, {sRB}, 7")
    e(f"s_add_u32 {sT[0]}, {sT[0]}, {FLG_OFF + phase*4096:#x}")
    poll(vFl, sT[0], t)

frag_soff(sT[1], sCT, A2_OFF, 16)
for p in range(2):
    pack_pair(t.q(p), SC[16*p:16*p+4], SC[16*p+8:16*p+12])
    e(f"buffer_store_dwordx4 {t.q(p)}, {vF16}, {rWS}, {sT[1]} offen sc1", tok=f"o{p}")
    if p == 0:
        e(f"s_add_u32 {sT[1]}, {sT[1]}, {2*16*1024}")
flag_set(0, "o1")
stamp("attn")
V.release("accq", "acck", "accv", "mc", "mpv", "mp1", "pm", "neg", "on4", "qp", "kp", "vp", "sc", "e", "mx")

vOut = V.alloc("vout")
e(f"v_and_b32 {t[0]}, 31, {vL}")
e(f"v_lshlrev_b32 {vOut}, 10, {t[0]}")
e(f"v_lshrrev_b32 {t[0]}, 5, {vL}")
e(f"v_lshl_add_u32 {vOut}, {t[0]}, 4, {vOut}")
sOut = S.alloc("out")
e(f"s_lshl_b32 {sOut}, {sRB}, 16")
e(f"s_lshl_b32 {sT[0]}, {sCT}, 5")
e(f"s_add_u32 {sOut}, {sOut}, {sT[0]}")
XR = V.alloc("xr", 8)
e(f"s_add_u32 {sT[0]}, {sOut}, 32768")
e(f"buffer_load_dwordx4 {XR.q(0)}, {vOut}, {rX}, {sOut} offen")
e(f"buffer_load_dwordx4 {XR.q(1)}, {vOut}, {rX}, {sT[0]} offen")
vG8 = V.alloc("g8")
e(f"v_lshlrev_b32 {vG8}, 3, {vG}")
B1P, B2P = V.alloc("b1p", 6, align=2), V.alloc("b2p", 2)
srd(rSM, sKA[10:12], 1376 * 2)
e(f"s_lshl_b32 {sT[0]}, {sCT}, 5")
e(f"s_lshl_b32 {sT[1]}, {sC2}, 5")
e(f"buffer_load_dwordx2 {B1P[0:2]}, {vG8}, {rSM}, {sT[0]} offen")
e(f"buffer_load_dwordx2 {B1P[2:4]}, {vG8}, {rSM}, {sT[0]} offen offset:1024")
e(f"buffer_load_dwordx2 {B1P[4:6]}, {vG8}, {rSM}, {sT[1]} offen")
srd(rPS, sKA[14:16], 1024)
e(f"buffer_load_dwordx2 {B2P}, {vG8}, {rPS}, {sT[0]} offen")
srd(rWM, sKB[4:6], 2048 * 1024)
rOUT = rWM
e("s_barrier")
modproc(1024, None, True)
modproc(2048, False, True)
e(f"v_lshlrev_b32 {t[1]}, 2, {vT}")
e(f"v_add_u32 {t[1]}, {L_EB + 6*1024}, {t[1]}")
e(f"ds_write_b32 {t[1]}, {vOnes}")
raw(waitds())
e("s_barrier")
sGC = S.alloc("gc", 5, align=1)
gv = V.alloc("gv", 16); gsum = V.alloc("gsum", 5, align=1)
e(f"v_lshlrev_b32 {t[0]}, 5, {vL}")
e(f"v_add_u32 {t[0]}, {L_MODF}, {t[0]}")
for k in range(2):
    e(f"ds_read_b128 {gv.q(k)}, {t[0]} offset:{3*2048 + k*16}")
    e(f"ds_read_b128 {gv.q(2+k)}, {t[0]} offset:{4*2048 + k*16}")
CV = V.alloc("cv", 16)
e(f"s_lshl_b32 {sT[0]}, {sCT}, 6")
e(f"s_add_u32 {sT[0]}, {sT[0]}, {L_MODF}")
e(f"v_lshl_add_u32 {t[1]}, {vG}, 4, {sT[0]}")
for k in range(4):
    e(f"ds_read_b128 {CV.q(k)}, {t[1]} offset:{(2+k)*2048}")
for i in range(8):
    sbv, gg = gv[i], gv[8+i]
    if i == 0:
        e(f"v_mov_b32 {gsum[0]}, {gg}"); e(f"v_mul_f32 {gsum[1]}, {gg}, {gg}"); e(f"v_mul_f32 {gsum[2]}, {gg}, {sbv}")
        e(f"v_mov_b32 {gsum[3]}, {sbv}"); e(f"v_mul_f32 {gsum[4]}, {sbv}, {sbv}")
    else:
        e(f"v_add_f32 {gsum[0]}, {gsum[0]}, {gg}"); e(f"v_fmac_f32 {gsum[1]}, {gg}, {gg}"); e(f"v_fmac_f32 {gsum[2]}, {gg}, {sbv}")
        e(f"v_add_f32 {gsum[3]}, {gsum[3]}, {sbv}"); e(f"v_fmac_f32 {gsum[4]}, {sbv}, {sbv}")
for sh in (8, 4, 2, 1):
    for k in range(5):
        e(f"v_add_f32_dpp {gsum[k]}, {gsum[k]}, {gsum[k]} row_ror:{sh} {DPPM}")
for sw in (swap16, swap32):
    for k in range(5): e(f"v_mov_b32 {t[k]}, {gsum[k]}")
    for k in range(5): sw(gsum[k], t[k])
    for k in range(5): e(f"v_add_f32 {gsum[k]}, {gsum[k]}, {t[k]}")
for k in range(5): e(f"v_mul_f32 {gsum[k]}, {f2u(1.0/512):#x}, {gsum[k]}")
for k in range(5): e(f"v_readfirstlane_b32 {sGC[k]}, {gsum[k]}")
V.release("gv", "gsum")
X1 = V.alloc("x1", 16)
for p in range(2):
    swap16(XR[4*p], XR[4*p+2]); swap16(XR[4*p+1], XR[4*p+3])
for k in range(8):
    e(f"v_lshlrev_b32 {X1[2*k]}, 16, {XR[k]}")
    e(f"v_and_b32 {X1[2*k+1]}, 0xffff0000, {XR[k]}")
V.release("xr")

sDs = S.alloc("ds")
def a_dma(base, KS, tstride, k0, k1, slot0, tokp):
    e(f"s_lshl2_add_u32 {sDs}, {sRB}, {sW}")
    e(f"s_mul_i32 {sDs}, {sDs}, {KS*1024}")
    e(f"s_add_u32 {sDs}, {sDs}, {base + k0*1024:#x}")
    e(f"s_mul_i32 {sT[1]}, {sW}, {tstride}")
    for k in range(k0, k1):
        j = k - k0
        if (j & 3) == 0:
            e(f"s_add_u32 m0, {sT[1]}, {L_A + (slot0 + j)*1024}")
            if j:
                e(f"s_add_u32 {sDs}, {sDs}, 4096")
        e(f"buffer_load_dwordx4 {vL16}, {rWS}, {sDs} offen offset:{(j & 3)*1024} sc1 lds", tok=f"{tokp}{k}")

flag_wait(0)
stamp("f1")
a_dma(A2_OFF, 16, 16384, 0, 16, 0, "a2_")
acc = V.alloc("acc", 48)
AF = V.alloc("af", 32)
def rd16(ks):
    for T in range(4):
        e(f"ds_read_b128 {AF.q((ks & 1)*4 + T)}, {vL16} offset:{L_A + T*16384 + ks*1024}")
for ks in range(16):
    if (ks & 3) == 0:
        raw(waitvm(f"a2_{ks+3}"))
        e("s_barrier")
        rd16(ks)
    if (ks & 3) != 3:
        rd16(ks + 1)
    for T in range(4):
        mfma(acc.q(T), BWO.q(ks), AF.q((ks & 1)*4 + T), 0 if ks == 0 else acc.q(T))
stamp("p2")
U = V.alloc("u", 16)
for T in range(4):
    for r in range(4):
        e(f"v_fmac_f32 {X1[4*T+r]}, {CV[r]}, {acc[4*T+r]}")
for T in range(4):
    for r in range(4):
        e(f"v_mul_f32 {U[4*T+r]}, {X1[4*T+r]}, {CV[8+r]}")
frag_soff(sT[1], sCT, A3_OFF, 16)
for p in range(2):
    pack_pair(t.q(p), U.q(2*p), U.q(2*p+1))
    e(f"buffer_store_dwordx4 {t.q(p)}, {vF16}, {rWS}, {sT[1]} offen sc1", tok=f"u{p}")
    if p == 0:
        e(f"s_add_u32 {sT[1]}, {sT[1]}, {2*16*1024}")
e(f"s_mul_i32 {sB[0]}, {sCT}, {43*1024}")
e(f"s_add_u32 {sB[0]}, {sB[0]}, {W2_OFF:#x}")
def b2_reg(ks):
    return BWO.q(ks) if ks < 16 else A.q(ks - 16)
SS = acc[16:40]
for T in range(4):
    x, u = X1.q(T), U.q(T)
    e(f"v_add_f32 {SS[0+T]}, {x[0]}, {x[1]}"); e(f"v_mul_f32 {SS[4+T]}, {x[0]}, {x[0]}")
    e(f"v_add_f32 {SS[8+T]}, {u[0]}, {u[1]}"); e(f"v_mul_f32 {SS[12+T]}, {u[0]}, {u[0]}")
    e(f"v_mul_f32 {SS[16+T]}, {u[0]}, {CV[8]}"); e(f"v_mul_f32 {SS[20+T]}, {u[0]}, {CV[4]}")
    for r in range(1, 4):
        if r > 1:
            e(f"v_add_f32 {SS[0+T]}, {SS[0+T]}, {x[r]}"); e(f"v_add_f32 {SS[8+T]}, {SS[8+T]}, {u[r]}")
        e(f"v_fmac_f32 {SS[4+T]}, {x[r]}, {x[r]}"); e(f"v_fmac_f32 {SS[12+T]}, {u[r]}, {u[r]}")
        e(f"v_fmac_f32 {SS[16+T]}, {u[r]}, {CV[8+r]}"); e(f"v_fmac_f32 {SS[20+T]}, {u[r]}, {CV[4+r]}")
for s in range(6): swap32(SS[4*s], SS[4*s+2]); swap32(SS[4*s+1], SS[4*s+3])
for s in range(6):
    e(f"v_add_f32 {SS[4*s]}, {SS[4*s]}, {SS[4*s+2]}"); e(f"v_add_f32 {SS[4*s+1]}, {SS[4*s+1]}, {SS[4*s+3]}")
for s in range(6): swap16(SS[4*s], SS[4*s+1])
for s in range(6): e(f"v_add_f32 {SS[4*s]}, {SS[4*s]}, {SS[4*s+1]}")
vL4 = V.alloc("l4")
e(f"v_lshlrev_b32 {vL4}, 2, {vL}")
e(f"s_mul_i32 {sT[0]}, {sW}, 1536")
e(f"s_add_u32 {sT[0]}, {sT[0]}, {L_SSC}")
e(f"v_add_u32 {t[8]}, {sT[0]}, {vL4}")
for s in range(6):
    e(f"ds_write_b32 {t[8]}, {SS[4*s]} offset:{s*256}")
raw(waitds())
e("s_barrier")
e(f"s_lshl_b32 {sT[2]}, {sW}, 8")
e(f"s_and_b32 {sT[3]}, {sW}, 1")
e(f"s_lshl_b32 {sT[3]}, {sT[3]}, 8")
e(f"s_add_u32 {sT[3]}, {sT[3]}, 1024")
e(f"s_add_u32 {sT[0]}, {sT[2]}, {L_SSC}")
e(f"s_add_u32 {sT[1]}, {sT[3]}, {L_SSC}")
e(f"v_add_u32 {t[8]}, {sT[0]}, {vL4}")
e(f"v_add_u32 {t[9]}, {sT[1]}, {vL4}")
for h in range(2):
    e(f"ds_read2st64_b32 {SS[4*h:4*h+2]}, {t[8+h]} offset0:0 offset1:6")
    e(f"ds_read2st64_b32 {SS[4*h+2:4*h+4]}, {t[8+h]} offset0:12 offset1:18")
e(f"s_lshl_b32 {sT[0]}, {sRB}, 3")
e(f"s_add_u32 {sT[0]}, {sT[0]}, {sM}")
e(f"s_mul_i32 {sT[0]}, {sT[0]}, 1536")
e(f"s_add_u32 {sT[0]}, {sT[0]}, {ST_OFF:#x}")
e(f"s_add_u32 {sT[2]}, {sT[2]}, {sT[0]}")
e(f"s_add_u32 {sT[3]}, {sT[3]}, {sT[0]}")
for h in range(2):
    e(f"v_add_f32 {SS[4*h]}, {SS[4*h]}, {SS[4*h+1]}"); e(f"v_add_f32 {SS[4*h+2]}, {SS[4*h+2]}, {SS[4*h+3]}")
for h in range(2):
    e(f"v_add_f32 {SS[4*h]}, {SS[4*h]}, {SS[4*h+2]}")
for h in range(2):
    e(f"buffer_store_dword {SS[4*h]}, {vL4}, {rWS}, {sT[2+h]} offen sc1", tok=f"ss{h}")
flag_set(1, "ss1")
stamp("e2")
V.release("u")
for ks in range(16):
    bload(b2_reg(ks), sB[0], ks)
PQ = V.alloc("pq", 12)
e(f"v_min_u32 {t[8]}, 2, {vI}")
e(f"v_lshrrev_b32 {t[9]}, 1, {t[8]}")
e(f"v_add_u32 {t[8]}, {t[8]}, {t[9]}")
e(f"v_lshlrev_b32 {t[8]}, 10, {t[8]}")
e(f"v_lshl_add_u32 {t[8]}, {vG}, 4, {t[8]}")
e(f"v_add_u32 {t[8]}, {L_EB + 3*1024}, {t[8]}")
for h in range(2):
    for k in range(8):
        e(f"ds_read_b128 {AF.q(k)}, {t[8]} offset:{(8*h+k)*64}")
    for k in range(8):
        ks = 8*h + k
        for c in range(3):
            mfma(PQ.q(c), A.q(ks*3+c), AF.q(k), 0 if ks == 0 else PQ.q(c))
flag_wait(1)
stamp("f2")
a_dma(A3_OFF, 16, 16384, 0, 16, 0, "a3_")
e(f"s_mul_i32 {sT[0]}, {sRB}, 12288")
e(f"s_mul_i32 {sT[1]}, {sW}, 3072")
e(f"s_add_u32 {sT[0]}, {sT[0]}, {sT[1]}")
e(f"s_add_u32 {sT[0]}, {sT[0]}, {ST_OFF:#x}")
e(f"s_add_u32 m0, {sT[1]}, {L_ST}")
for k in range(3):
    e(f"buffer_load_dwordx4 {vL16}, {rWS}, {sT[0]} offen offset:{k*1024} sc1 lds", tok=f"std{k}")
b2next = [16]
for ks in range(16):
    if (ks & 3) == 0:
        raw(waitvm(f"a3_{ks+3}" if ks < 12 else "std2"))
        e("s_barrier")
        rd16(ks)
    if (ks & 3) != 3:
        rd16(ks + 1)
    for T in range(4):
        for c in range(3):
            mfma(acc.q(c*4+T), A.q(ks*3+c), AF.q((ks & 1)*4 + T), 0 if ks == 0 else acc.q(c*4+T))
    for _ in range(3):
        if b2next[0] < 43:
            bload(b2_reg(b2next[0]), sB[0], b2next[0]); b2next[0] += 1
stamp("p3")
SG = V.alloc("sg", 48)
e(f"v_add_u32 {t[8]}, {L_ST}, {vL4}")
for m in range(8):
    for s2 in range(3):
        e(f"ds_read2st64_b32 {SG[6*m+2*s2:6*m+2*s2+2]}, {t[8]} offset0:{6*m+2*s2} offset1:{6*m+2*s2+1}")
for step in (24, 12, 6):
    for k in range(step):
        e(f"v_add_f32 {SG[k]}, {SG[k]}, {SG[k+step]}")
for k in range(6): e(f"v_mul_f32 {SG[k]}, {f2u(1.0/512):#x}, {SG[k]}")
mu, x2, u1, u2, ug, ub = [SG[k] for k in range(6)]
RP = AF[16:32]
r_, mh, e2, tq = SG[8], SG[9], SG[10], SG[11]
e(f"v_fma_f32 {x2}, -{mu}, {mu}, {x2}")
e(f"v_max_f32 {x2}, 0, {x2}")
e(f"v_add_f32 {x2}, {f2u(1e-5):#x}, {x2}")
e(f"v_rsq_f32 {r_}, {x2}")
e(f"v_fma_f32 {u1}, -{mu}, {sGC[0]}, {u1}")
e(f"v_fma_f32 {mh}, {r_}, {u1}, {sGC[3]}")
e(f"v_mul_f32 {tq}, {sGC[1]}, {mu}")
e(f"v_fma_f32 {tq}, {ug}, -2.0, {tq}")
e(f"v_fma_f32 {u2}, {mu}, {tq}, {u2}")
e(f"v_fma_f32 {ub}, -{mu}, {sGC[2]}, {ub}")
e(f"v_add_f32 {ub}, {ub}, {ub}")
e(f"v_fma_f32 {e2}, {r_}, {u2}, {ub}")
e(f"v_fma_f32 {e2}, {r_}, {e2}, {sGC[4]}")
e(f"v_fma_f32 {e2}, -{mh}, {mh}, {e2}")
e(f"v_max_f32 {e2}, 0, {e2}")
e(f"v_add_f32 {e2}, {f2u(1e-5):#x}, {e2}")
e(f"v_rsq_f32 {RP[4]}, {e2}")
e(f"v_mul_f32 {RP[0]}, {r_}, {RP[4]}")
e(f"v_mul_f32 {RP[8]}, -{mu}, {RP[0]}")
e(f"v_mul_f32 {RP[12]}, -{mh}, {RP[4]}")
for k in range(4): allgather(RP.q(k))
B1F = AF[0:12]
for k in range(6):
    e(f"v_lshlrev_b32 {B1F[2*k]}, 16, {B1P[k]}")
    e(f"v_and_b32 {B1F[2*k+1]}, 0xffff0000, {B1P[k]}")
C1 = 2 * 0.7978845608028654 * 1.4426950408889634
e(f"s_mov_b32 {sT[4]}, {f2u(-C1 * 0.044715):#x}")
frag_soff(sT[1], sCT, A4_OFF, 43)
e(f"s_add_u32 {sT[2]}, {sT[1]}, {32*512}")
frag_soff(sT[3], sC2, A4_OFF, 43)
e(f"s_cmp_lt_u32 {sC2}, 86")
e(f"s_cselect_b32 {sT[3]}, {sT[3]}, {OOB:#x}")
for c in range(3):
    for p in range(2):
        w8 = SG[16*p:16*p+8]
        for k in range(8):
            T, r = 2*p + (k >> 2), k & 3
            x = acc[c*16 + 4*T + r]
            e(f"v_fma_f32 {x}, {x}, {RP[T]}, {B1F[4*c+r]}")
        for (pi, lane) in ((1, 0), (2, 1), (3, 2)):
            for k in range(8):
                T, r = 2*p + (k >> 2), k & 3
                x = acc[c*16 + 4*T + r]
                e(f"v_fmac_f32_dpp {x}, {PQ[4*c+r]}, {RP[4*pi+T]} row_newbcast:{lane} {DPPM}")
        xs = [acc[c*16 + 8*p + k] for k in range(8)]
        for k in range(8): e(f"v_mul_f32 {w8[k]}, {xs[k]}, {xs[k]}")
        for k in range(8): e(f"v_mul_f32 {w8[k]}, {sT[4]}, {w8[k]}")
        for k in range(8): e(f"v_add_f32 {w8[k]}, {f2u(-C1):#x}, {w8[k]}")
        for k in range(8): e(f"v_mul_f32 {w8[k]}, {w8[k]}, {xs[k]}")
        for k in range(8): e(f"v_exp_f32 {w8[k]}, {w8[k]}")
        for k in range(8): e(f"v_add_f32 {w8[k]}, 1.0, {w8[k]}")
        for k in range(8): e(f"v_rcp_f32 {w8[k]}, {w8[k]}")
        for k in range(8): e(f"v_mul_f32 {w8[k]}, {w8[k]}, {xs[k]}")
        pack_pair(t.q(p), w8[0:4], w8[4:8])
        e(f"buffer_store_dwordx4 {t.q(p)}, {vF43}, {rWS}, {sT[1+c]} offen sc1", tok=f"h{c}{p}")
        if p == 0:
            e(f"s_add_u32 {sT[1+c]}, {sT[1+c]}, {2*43*1024}")
flag_set(2, "h21")
stamp("e3")
V.release("sg", "pq", "b1p")
vA4 = V.alloc("a4", 4)
for T in range(4):
    e(f"v_add_u32 {vA4[T]}, {L_A + T*A4_SLOTS*1024}, {vL16}")
flag_wait(2)
stamp("f3")
a_dma(A4_OFF, 43, A4_SLOTS*1024, 0, A4_SLOTS, 0, "a4_")
def rd43(ks):
    for T in range(4):
        e(f"ds_read_b128 {AF.q((ks & 1)*4 + T)}, {vA4[T]} offset:{(ks % A4_SLOTS)*1024}")
for ks in range(43):
    if (ks & 3) == 0:
        raw(waitvm(f"a4_{min(ks+3, 42)}"))
        e("s_barrier")
        if ks == 8:
            a_dma(A4_OFF, 43, A4_SLOTS*1024, A4_SLOTS, 43, 0, "a4_")
        rd43(ks)
    if (ks & 3) != 3 and ks < 42:
        rd43(ks + 1)
    for T in range(4):
        mfma(acc.q(T), b2_reg(ks), AF.q((ks & 1)*4 + T), 0 if ks == 0 else acc.q(T))
stamp("p4")
for k in range(2):
    e(f"v_lshlrev_b32 {t[8+2*k]}, 16, {B2P[k]}")
    e(f"v_and_b32 {t[8+2*k+1]}, 0xffff0000, {B2P[k]}")
for T in range(4):
    for r in range(4):
        e(f"v_add_f32 {acc[4*T+r]}, {acc[4*T+r]}, {t[8+r]}")
for T in range(4):
    for r in range(4):
        e(f"v_fmac_f32 {X1[4*T+r]}, {CV[12+r]}, {acc[4*T+r]}")
for p in range(2):
    pack_pair(t.q(p), X1.q(2*p), X1.q(2*p+1))
    e(f"buffer_store_dwordx4 {t.q(p)}, {vOut}, {rOUT}, {sOut} offen")
    if p == 0:
        e(f"s_add_u32 {sOut}, {sOut}, 32768")
if STAMPS:
    e("s_waitcnt vmcnt(0)")
    stamp("end")
    e(f"s_lshl2_add_u32 {sT[0]}, s2, {sW}")
    e(f"s_lshl_b32 {sT[0]}, {sT[0]}, 8")
    e(f"s_add_u32 {sT[0]}, {sT[0]}, {DBG_OFF:#x}")
    e(f"buffer_store_dword {vST}, {vL4}, {rWS}, {sT[0]} offen")
e("L_end:")
e("s_endpgm")

final = insert_nops(insert_waits(prog))
hdr = open(os.path.join(os.path.dirname(os.path.abspath(__file__)), "..", "cdna_kernels", NAME + ".s.ref")).read()
head = hdr.split("; @launch")[0]
body = "\n".join(("" if i.cls == "label" else "    ") + i.text for i in final)
txt = f"""{head}; @launch grid=(256,1,1) block=(256,1,1) lds={LDS_SIZE}
.amdgcn_target "amdgcn-amd-amdhsa--gfx950"
.text
.globl {NAME}_kernel
.p2align 8
.type {NAME}_kernel,@function
{NAME}_kernel:
{body}
L_code_end:
.set CODE_LAST, L_code_end - {NAME}_kernel - 128
.section .rodata,"a"
.p2align 6
.amdhsa_kernel {NAME}_kernel
  .amdhsa_next_free_vgpr 512
  .amdhsa_next_free_sgpr 102
  .amdhsa_accum_offset 256
  .amdhsa_group_segment_fixed_size 0
  .amdhsa_kernarg_size 104
  .amdhsa_user_sgpr_count 2
  .amdhsa_user_sgpr_kernarg_segment_ptr 1
  .amdhsa_system_sgpr_workgroup_id_x 1
.end_amdhsa_kernel
"""
out = [a for a in sys.argv[1:] if not a.startswith("--")]
path = out[0] if out else os.path.join(os.path.dirname(os.path.abspath(__file__)), "..", "cdna_kernels", NAME + ".s")
open(path, "w").write(txt)
from collections import Counter
cnt = Counter(i.cls for i in final)
nopst = sum(i.states() for i in final if i.mn == "s_nop")
open(path + ".names", "w").write(",".join(stamp_names))
print("wrote", path, dict(cnt), "nop states", nopst, "vgpr high", V.high, "stamps", stamp_names, file=sys.stderr)
```
